```python
import torch

def _softmax(x, axis=-1):
    return torch.softmax(x, dim=axis)
def _gelu(x):
    return torch.nn.functional.gelu(x, approximate="tanh")
def _silu(x):
    return torch.nn.functional.silu(x)
def _sigmoid(x):
    return torch.sigmoid(x)
def _layernorm(x, axis=-1, eps=1e-5):
    m = x.mean(dim=axis, keepdim=True)
    v = x.var(dim=axis, keepdim=True, unbiased=False)
    return (x - m) / torch.sqrt(v + eps)
def _scatter_add(tgt, idx, src, axis=0):
    return tgt.clone().index_add_(axis, idx, src)
def _segment_sum(src, seg, n):
    out = torch.zeros((n,) + src.shape[1:], dtype=src.dtype)
    return out.index_add_(0, seg, src)
def _pad(x, pw):
    flat = tuple(v for pair in reversed(pw) for v in pair)
    return torch.nn.functional.pad(x, flat)

kernel_name = 'standalone__gqa_block_cached__near_ridge'

def setup_inputs():

    _w = (lambda a: (lambda t: t.to(torch.bfloat16) if t.is_floating_point() else t)(torch.as_tensor(a)))
    B, Sq, D = 8, 256, 640
    Hq, Hkv, Sk, Dh = 32, 32, 1024, 192
    assert Hq % Hkv == 0, (Hq, Hkv)
    return {
        "x": _w((lambda *s: torch.randn(*s, dtype=torch.bfloat16) * 0.8)(B, Sq, D)),
        "k_cache": _w((lambda *s: torch.randn(*s, dtype=torch.bfloat16) * 0.8)(B, Hkv, Sk, Dh)),
        "v_cache": _w((lambda *s: torch.randn(*s, dtype=torch.bfloat16) * 0.05)(B, Hkv, Sk, Dh)),
        "wq": _w((lambda *s: torch.randn(*s, dtype=torch.bfloat16) * 0.8)(D, Hq * Dh) * (D ** -0.5)),
        "wo": _w((lambda *s: torch.randn(*s, dtype=torch.bfloat16) * 0.05)(Hq * Dh, D) * ((Hq * Dh) ** -0.5)),
    }

def reference(x, k_cache, v_cache, wq, wo):
    B, Sq, D = x.shape
    Hq, Dh = 32, 192
    Hkv = k_cache.shape[1]
    rep = Hq // Hkv
    q = (lambda x, *d: x.permute(*d))((x @ wq).reshape(B, Sq, Hq, Dh), 0, 2, 1, 3)
    k = (lambda x, n, axis: torch.repeat_interleave(x, n, dim=axis))(k_cache, rep, axis=1)
    v = (lambda x, n, axis: torch.repeat_interleave(x, n, dim=axis))(v_cache, rep, axis=1)
    scores = torch.einsum("bhqd,bhkd->bhqk", q, k) * (Dh ** -0.5)
    p = _softmax(scores, axis=-1)
    o = torch.einsum("bhqk,bhkd->bhqd", p, v)
    return (lambda x, *d: x.permute(*d))(o, 0, 2, 1, 3).reshape(B, Sq, Hq * Dh) @ wo
```

```python
HDR = '''; @launch grid=(256,1,1) block=(256,1,1) lds=163840
.amdgcn_target "amdgcn-amd-amdhsa--gfx950"
.text
.globl standalone__gqa_block_cached__near_ridge_kernel
.p2align 8
.type standalone__gqa_block_cached__near_ridge_kernel,@function
standalone__gqa_block_cached__near_ridge_kernel:
'''
TAIL = '''.section .rodata,"a"
.p2align 6
.amdhsa_kernel standalone__gqa_block_cached__near_ridge_kernel
  .amdhsa_next_free_vgpr 256
  .amdhsa_next_free_sgpr 102
  .amdhsa_accum_offset 256
  .amdhsa_group_segment_fixed_size 0
  .amdhsa_kernarg_size 64
  .amdhsa_user_sgpr_count 2
  .amdhsa_user_sgpr_kernarg_segment_ptr 1
  .amdhsa_system_sgpr_workgroup_id_x 1
.end_amdhsa_kernel
'''
def gen(pattern, name, reps=4, depth=16):
    L = []; A = L.append
    A("s_cmp_ge_u32 s2, 256\ns_cbranch_scc1 L_end")
    A("s_memrealtime s[40:41]")
    A("s_load_dwordx2 s[4:5], s[0:1], 0")
    A("s_load_dwordx2 s[8:9], s[0:1], 56")
    A("s_waitcnt lgkmcnt(0)")
    A("s_lshr_b32 s3, s2, 5\ns_mul_i32 s3, s3, 327680")
    A("s_add_u32 s12, s4, s3\ns_addc_u32 s13, s5, 0\ns_mov_b32 s14, 327680\ns_mov_b32 s15, 0x20000")
    A("v_lshrrev_b32 v1, 6, v0\ns_nop 0\nv_readfirstlane_b32 s20, v1")
    A("v_and_b32 v2, 63, v0")
    A("s_mul_i32 s21, s20, 81920")
    A("s_mul_i32 s25, s20, 32768")
    if pattern == "frag":
        A("v_and_b32 v3, 31, v2\nv_mul_u32_u24 v3, 1280, v3\nv_lshrrev_b32 v4, 5, v2\nv_lshlrev_b32 v4, 4, v4\nv_add_u32 v3, v3, v4\nv_add_u32 v3, s21, v3")
        A("v_add_u32 v5, 40960, v3")
    elif pattern in ("dma128", "reg128"):
        A("v_lshrrev_b32 v3, 3, v2\nv_mul_u32_u24 v3, 1280, v3\nv_and_b32 v4, 7, v2\nv_lshlrev_b32 v4, 4, v4\nv_add_u32 v3, v3, v4\nv_add_u32 v3, s21, v3")
    elif pattern in ("dmalin", "reglin"):
        A("v_lshlrev_b32 v3, 4, v2\nv_add_u32 v3, s21, v3")
    for rep in range(reps + 1):
        if rep == 1:
            A("s_waitcnt vmcnt(0)\ns_barrier\ns_memrealtime s[42:43]")
        n = 0
        for i in range(80):
            r = 16 + 4 * (n % depth)
            if pattern == "frag":
                ks, qb = i // 2, i % 2
                A(f"buffer_load_dwordx4 v[{r}:{r+3}], v{3 if qb == 0 else 5}, s[12:15], 0 offen offset:{ks*32}")
            elif pattern == "reg128":
                ch, rb = i // 8, i % 8
                A(f"s_mov_b32 s30, {rb*8*1280}")
                A(f"buffer_load_dwordx4 v[{r}:{r+3}], v3, s[12:15], s30 offen offset:{ch*128}")
            elif pattern == "dma128":
                ch, rb = i // 8, i % 8
                A(f"s_mov_b32 s30, {rb*8*1280 + ch*128}\ns_add_u32 m0, s25, {(n%32)*1024}\ns_nop 0")
                A(f"buffer_load_dwordx4 v3, s[12:15], s30 offen lds")
            elif pattern == "reglin":
                A(f"s_mov_b32 s30, {i*1024}")
                A(f"buffer_load_dwordx4 v[{r}:{r+3}], v3, s[12:15], s30 offen")
            elif pattern == "dmalin":
                A(f"s_mov_b32 s30, {i*1024}\ns_add_u32 m0, s25, {(n%32)*1024}\ns_nop 0")
                A(f"buffer_load_dwordx4 v3, s[12:15], s30 offen lds")
            n += 1
            A(f"s_waitcnt vmcnt({depth-1})")
    A("s_waitcnt vmcnt(0)\ns_barrier")
    A("s_memrealtime s[44:45]\ns_waitcnt lgkmcnt(0)")
    A("s_add_u32 s8, s8, 0x10000000\ns_addc_u32 s9, s9, 0\ns_lshl_b32 s3, s2, 7\ns_add_u32 s8, s8, s3\ns_addc_u32 s9, s9, 0")
    A("v_mov_b32 v4, s40\nv_mov_b32 v5, s41\nv_mov_b32 v6, s42\nv_mov_b32 v7, s43\nv_mov_b32 v8, s44\nv_mov_b32 v9, s45\nv_mov_b32 v3, 0")
    A("v_cmp_eq_u32 vcc, 0, v0\ns_and_saveexec_b64 s[26:27], vcc\ns_cbranch_execz L_end")
    A("global_store_dwordx4 v3, v[4:7], s[8:9]\nglobal_store_dwordx2 v3, v[8:9], s[8:9] offset:16")
    A("L_end:\ns_endpgm")
    open(name + ".s", "w").write(HDR + "\n".join(L) + "\n" + TAIL)
for p in ["frag", "reg128", "dma128", "reglin", "dmalin"]:
    gen(p, "mbx_" + p)
    gen(p, "mbx_" + p + "_d32", depth=32)
```

```python
from mb_x import HDR, TAIL
def gen(name, shape, rnd=True, nop=None, iters=5, nseg=8):
    L = []; A = L.append
    A("s_cmp_ge_u32 s2, 256\ns_cbranch_scc1 L_end")
    A("s_load_dwordx2 s[8:9], s[0:1], 56\ns_load_dwordx2 s[4:5], s[0:1], 8")
    A("s_waitcnt lgkmcnt(0)")
    A("v_lshlrev_b32 v1, 4, v0")
    for i in range(16):
        if rnd: A(f"global_load_dwordx4 v[{64+4*i}:{67+4*i}], v1, s[4:5] offset:{0}\nv_add_u32 v1, 4096, v1")
        else:
            for j in range(4): A(f"v_mov_b32 v{64+4*i+j}, 0")
    for i in range(128, 256): A(f"v_mov_b32 v{i}, 0")
    A("s_waitcnt vmcnt(0)\ns_barrier")
    A("s_memrealtime s[40:41]\ns_waitcnt lgkmcnt(0)")
    for seg in range(nseg):
        A(f"s_mov_b32 s30, 0\nL_top{seg}:")
        if shape == 32:
            for i in range(64):
                a = 128 + 16*(i%8); x = 64 + 4*(i%8); y = 96 + 4*((i//8)%8)
                A(f"v_mfma_f32_32x32x16_bf16 v[{a}:{a+15}], v[{x}:{x+3}], v[{y}:{y+3}], v[{a}:{a+15}]")
                if nop is not None: A(f"s_nop {nop}")
        else:
            for i in range(128):
                a = 128 + 4*(i%32); x = 64 + 4*(i%8); y = 96 + 4*((i//8)%8)
                A(f"v_mfma_f32_16x16x32_bf16 v[{a}:{a+3}], v[{x}:{x+3}], v[{y}:{y+3}], v[{a}:{a+3}]")
                if nop is not None: A(f"s_nop {nop}")
        A(f"s_add_u32 s30, s30, 1\ns_cmp_lt_u32 s30, {iters}\ns_cbranch_scc1 L_top{seg}")
        A(f"s_memrealtime s[{42+2*seg}:{43+2*seg}]")
    A("s_waitcnt lgkmcnt(0)")
    A("s_add_u32 s8, s8, 0x10000000\ns_addc_u32 s9, s9, 0\ns_lshl_b32 s3, s2, 7\ns_add_u32 s8, s8, s3\ns_addc_u32 s9, s9, 0")
    for i in range(20): A(f"v_mov_b32 v{4+i}, s{40+i}")
    A("v_mov_b32 v3, 0")
    A("v_cmp_eq_u32 vcc, 0, v0\ns_and_saveexec_b64 s[26:27], vcc\ns_cbranch_execz L_end")
    for i in range(5): A(f"global_store_dwordx4 v3, v[{4+4*i}:{7+4*i}], s[8:9] offset:{16*i}")
    A("L_end:\ns_endpgm")
    open(name + ".s", "w").write(HDR + "\n".join(L) + "\n" + TAIL)
gen("mbd_32", 32); gen("mbd_32n7", 32, nop=7); gen("mbd_32n9", 32, nop=9); gen("mbd_32n13", 32, nop=13); gen("mbd_16", 16); gen("mbd_16n2", 16, nop=2)
```

```python
from mb_x import HDR, TAIL
def gen(name, touch, lanes=64, sleep=8, who=3, depth=8):
    L = []; A = L.append
    A("s_cmp_ge_u32 s2, 256\ns_cbranch_scc1 L_end")
    A("s_memrealtime s[40:41]")
    A("s_load_dwordx4 s[4:7], s[0:1], 0\ns_load_dwordx2 s[8:9], s[0:1], 56\ns_waitcnt lgkmcnt(0)")
    A("s_and_b32 s3, s2, 7\ns_mul_i32 s3, s3, 327680")
    A("s_add_u32 s12, s4, s3\ns_addc_u32 s13, s5, 0\ns_mov_b32 s14, 327680\ns_mov_b32 s15, 0x20000")
    A("s_mul_i32 s3, s2, 393216\ns_add_u32 s16, s6, s3\ns_addc_u32 s17, s7, 0\ns_mov_b32 s18, 393216\ns_mov_b32 s19, 0x20000")
    A("v_lshrrev_b32 v1, 6, v0\ns_nop 0\nv_readfirstlane_b32 s20, v1")
    A("v_and_b32 v2, 63, v0\ns_mul_i32 s21, s20, 81920\ns_mul_i32 s25, s20, 32768\nv_lshlrev_b32 v3, 4, v2\nv_add_u32 v3, s21, v3")
    A(f"v_min_u32 v4, {lanes-1}, v2\nv_lshlrev_b32 v4, 7, v4")
    A("s_mov_b32 s30, 0\ns_mov_b32 m0, s25\nL_w:\nbuffer_load_dwordx4 v3, s[12:15], s30 offen lds\ns_add_u32 s30, s30, 1024\ns_cmp_lt_u32 s30, 81920\ns_cbranch_scc1 L_w")
    A("s_waitcnt vmcnt(0)\ns_barrier\ns_memrealtime s[42:43]")
    A("s_mov_b32 s31, 0")
    if who == 3:
        A("s_cmp_eq_u32 s20, 3\ns_cbranch_scc1 L_t")
    A("s_mov_b32 s33, 0\nL_r:\ns_mov_b32 s30, 0\nL_d:")
    for i in range(8):
        A(f"buffer_load_dwordx4 v3, s[12:15], s30 offen lds\ns_add_u32 s30, s30, 1024\ns_waitcnt vmcnt({depth})")
    if who == 0 and touch:
        A(f"s_mul_i32 s34, s20, 98304\ns_add_u32 s34, s34, s31\nbuffer_load_dword v10, v4, s[16:19], s34 offen\ns_add_u32 s31, s31, {lanes*128}")
    A("s_cmp_lt_u32 s30, 81920\ns_cbranch_scc1 L_d\ns_add_u32 s33, s33, 1\ns_cmp_lt_u32 s33, 4\ns_cbranch_scc1 L_r")
    A("s_waitcnt vmcnt(0)\ns_branch L_j")
    A("L_t:")
    if touch and who == 3:
        A(f"L_tl:\nbuffer_load_dword v10, v4, s[16:19], s31 offen\ns_sleep {sleep}\ns_add_u32 s31, s31, {lanes*128}\ns_cmp_lt_u32 s31, {touch}\ns_cbranch_scc1 L_tl\ns_waitcnt vmcnt(0)")
    A("s_endpgm")
    A("L_j:\ns_memrealtime s[44:45]\ns_waitcnt lgkmcnt(0)")
    A("s_add_u32 s8, s8, 0x10000000\ns_addc_u32 s9, s9, 0\ns_lshl_b32 s3, s2, 7\ns_add_u32 s8, s8, s3\ns_addc_u32 s9, s9, 0")
    A("v_mov_b32 v4, s40\nv_mov_b32 v5, s41\nv_mov_b32 v6, s42\nv_mov_b32 v7, s43\nv_mov_b32 v8, s44\nv_mov_b32 v9, s45\nv_mov_b32 v3, 0")
    A("v_cmp_eq_u32 vcc, 0, v0\ns_and_saveexec_b64 s[26:27], vcc\ns_cbranch_execz L_end")
    A("global_store_dwordx4 v3, v[4:7], s[8:9]\nglobal_store_dwordx2 v3, v[8:9], s[8:9] offset:16")
    A("L_end:\ns_endpgm")
    open(name + ".s", "w").write(HDR + "\n".join(L) + "\n" + TAIL)
gen("mh_0", 0); gen("mh_a", 131072, 16, 6); gen("mh_b", 196608, 32, 8); gen("mh_c", 65536, 8, 6); gen("mh_s0", 0, who=0); gen("mh_s", 1, 8, who=0)
```
